```python
import torch

def _softmax(x, axis=-1):
    return torch.softmax(x, dim=axis)
def _gelu(x):
    return torch.nn.functional.gelu(x, approximate="tanh")
def _silu(x):
    return torch.nn.functional.silu(x)
def _sigmoid(x):
    return torch.sigmoid(x)
def _layernorm(x, axis=-1, eps=1e-5):
    m = x.mean(dim=axis, keepdim=True)
    v = x.var(dim=axis, keepdim=True, unbiased=False)
    return (x - m) / torch.sqrt(v + eps)
def _scatter_add(tgt, idx, src, axis=0):
    return tgt.clone().index_add_(axis, idx, src)
def _segment_sum(src, seg, n):
    out = torch.zeros((n,) + src.shape[1:], dtype=src.dtype)
    return out.index_add_(0, seg, src)
def _pad(x, pw):
    flat = tuple(v for pair in reversed(pw) for v in pair)
    return torch.nn.functional.pad(x, flat)

kernel_name = 'recurrent_scan__gqa_block_cached__geglu_ffn__decode'

def setup_inputs():

    _w = (lambda a: (lambda t: t.to(torch.bfloat16) if t.is_floating_point() else t)(torch.as_tensor(a)))
    def _A_setup():
        B, Sq, D = 2, 1, 512
        Hq, Hkv, Sk, Dh = 32, 32, 8192, 128
        assert Hq % Hkv == 0, (Hq, Hkv)
        return {
            "x": _w((lambda *s: torch.randn(*s, dtype=torch.bfloat16) * 0.05)(B, Sq, D)),
            "k_cache": _w((lambda *s: torch.randn(*s, dtype=torch.bfloat16) * 1.6)(B, Hkv, Sk, Dh)),
            "v_cache": _w((lambda *s: torch.randn(*s, dtype=torch.bfloat16) * 0.2)(B, Hkv, Sk, Dh)),
            "wq": _w((lambda *s: torch.randn(*s, dtype=torch.bfloat16) * 1.6)(D, Hq * Dh) * (D ** -0.5)),
            "wo": _w((lambda *s: torch.randn(*s, dtype=torch.bfloat16) * 0.2)(Hq * Dh, D) * ((Hq * Dh) ** -0.5)),
        }
    _A_in = _A_setup()

    def _B_setup():
        B, S, D, F = 2, 1, 512, 1376
        return {
            "x": _w((lambda *s: torch.randn(*s, dtype=torch.bfloat16) * 0.05)(B, S, D)),
            "w_gate": _w((lambda *s: torch.randn(*s, dtype=torch.bfloat16) * 0.1)(D, F)),
            "w_up": _w((lambda *s: torch.randn(*s, dtype=torch.bfloat16) * 0.1)(D, F)),
            "w_down": _w((lambda *s: torch.randn(*s, dtype=torch.bfloat16) * 0.1)(F, D)),
        }
    _B_in = _B_setup()

    return {
        "A_x": _A_in["x"],
        "A_k_cache": _A_in["k_cache"],
        "A_v_cache": _A_in["v_cache"],
        "A_wq": _A_in["wq"],
        "A_wo": _A_in["wo"],
        "B_x": _B_in["x"],
        "B_w_gate": _B_in["w_gate"],
        "B_w_up": _B_in["w_up"],
        "B_w_down": _B_in["w_down"],
    }

def reference(A_x, A_k_cache, A_v_cache, A_wq, A_wo, B_x, B_w_gate, B_w_up, B_w_down):
    def _A_ref(x, k_cache, v_cache, wq, wo):
        B, Sq, D = x.shape
        Hq, Dh = 32, 128
        Hkv = k_cache.shape[1]
        rep = Hq // Hkv
        q = (lambda x, *d: x.permute(*d))((x @ wq).reshape(B, Sq, Hq, Dh), 0, 2, 1, 3)
        k = (lambda x, n, axis: torch.repeat_interleave(x, n, dim=axis))(k_cache, rep, axis=1)
        v = (lambda x, n, axis: torch.repeat_interleave(x, n, dim=axis))(v_cache, rep, axis=1)
        scores = torch.einsum("bhqd,bhkd->bhqk", q, k) * (Dh ** -0.5)
        p = _softmax(scores, axis=-1)
        o = torch.einsum("bhqk,bhkd->bhqd", p, v)
        return (lambda x, *d: x.permute(*d))(o, 0, 2, 1, 3).reshape(B, Sq, Hq * Dh) @ wo

    def _B_ref(x, w_gate, w_up, w_down):
        return (_gelu(x @ w_gate) * (x @ w_up)) @ w_down

    x = A_x
    xn = _layernorm(x, axis=-1)
    s = _A_ref(xn, A_k_cache, A_v_cache, A_wq, A_wo)
    g = _silu(_B_ref(xn, B_w_gate, B_w_up, B_w_down))
    return x + s * g
```

```python
import struct, sys

NAME = "recurrent_scan__gqa_block_cached__geglu_ffn__decode"
K1 = NAME + "_kernel"
K2 = "final_kernel"

NT = " nt"
MODE = "unroll"
INSTR = False
NOWQ = False
PRIO = False
NOWO = False
for a in sys.argv[1:]:
    if a == "nont":
        NT = ""
    if a == "loop":
        MODE = "loop"
    if a == "instr":
        INSTR = True
    if a == "prio":
        PRIO = True
    if a == "nowq":
        NOWQ = True
    if a == "nowo":
        NOWO = True

def f2u(x):
    return struct.unpack("<I", struct.pack("<f", x))[0]

import math
C_SCALE = (128 ** -0.5) * math.log2(math.e)

L = []
def I(s): L.append("    " + s)
def LB(s): L.append(s + ":")
def CM(s): L.append("    ; " + s)

DPPM = " row_mask:0xf bank_mask:0xf"

LQ, LM, LL, LO, LY = 0, 4096, 4224, 4352, 20736
FP, FH, FY = 0, 16384, 16640
LDS1 = 50176

WS_Y = 0
WS_ML = 524288
WS_F = 1048576

NFFN = 43
NATT = 256

def stamp(k):
    if INSTR:
        I(f"s_memrealtime s[{50+2*k}:{51+2*k}]")

def allreduce64(v):
    I("s_nop 1")
    I(f"v_add_f32_dpp v{v}, v{v}, v{v} quad_perm:[1,0,3,2]{DPPM}")
    I("s_nop 1")
    I(f"v_add_f32_dpp v{v}, v{v}, v{v} quad_perm:[2,3,0,1]{DPPM}")
    I("s_nop 1")
    I(f"v_add_f32_dpp v{v}, v{v}, v{v} row_half_mirror{DPPM}")
    I("s_nop 1")
    I(f"v_add_f32_dpp v{v}, v{v}, v{v} row_mirror{DPPM}")
    I("s_nop 0")
    I(f"v_readlane_b32 s30, v{v}, 0")
    I(f"v_readlane_b32 s31, v{v}, 16")
    I(f"v_readlane_b32 s32, v{v}, 32")
    I(f"v_readlane_b32 s33, v{v}, 48")
    I("s_nop 1")
    I(f"v_mov_b32 v{v}, s30")
    I(f"v_add_f32 v{v}, s31, v{v}")
    I(f"v_add_f32 v{v}, s32, v{v}")
    I(f"v_add_f32 v{v}, s33, v{v}")

def rne(dst, src):
    I(f"v_cvt_pk_bf16_f32 v{dst}, v{src}, v{src}")
    I(f"v_and_b32 v{dst}, 0xffff0000, v{dst}")

def ln_stats(xr, e, t0, t1, mbf, sd, rc):
    for r in range(4):
        I(f"v_lshlrev_b32 v{e[2*r]}, 16, v{xr+r}")
        I(f"v_and_b32 v{e[2*r+1]}, 0xffff0000, v{xr+r}")
    I(f"v_add_f32 v{t0}, v{e[0]}, v{e[1]}")
    for k in range(2, 8):
        I(f"v_add_f32 v{t0}, v{t0}, v{e[k]}")
    allreduce64(t0)
    I(f"v_mul_f32 v{t0}, 0x{f2u(1.0/512):08x}, v{t0}")
    for k in range(8):
        I(f"v_sub_f32 v{e[k]}, v{e[k]}, v{t0}")
    I(f"v_mul_f32 v{t1}, v{e[0]}, v{e[0]}")
    for k in range(1, 8):
        I(f"v_fmac_f32 v{t1}, v{e[k]}, v{e[k]}")
    allreduce64(t1)
    I(f"v_mul_f32 v{t1}, 0x{f2u(1.0/512):08x}, v{t1}")
    rne(mbf, t0)
    rne(t1, t1)
    I(f"v_add_f32 v{t1}, 0x{f2u(1e-5):08x}, v{t1}")
    rne(t1, t1)
    I(f"v_sqrt_f32 v{t1}, v{t1}")
    I("s_nop 0")
    rne(sd, t1)
    I(f"v_rcp_f32 v{rc}, v{sd}")
    I("s_nop 0")

def ln_apply(dst, xe, mbf, sd, rc, t0, t1):
    I(f"v_lshlrev_b32 v{t0}, 16, v{xe}")
    I(f"v_sub_f32 v{t0}, v{t0}, v{mbf}")
    rne(t0, t0)
    I(f"v_mul_f32 v{t1}, v{t0}, v{rc}")
    I(f"v_fma_f32 v{t0}, -v{t1}, v{sd}, v{t0}")
    I(f"v_fmac_f32 v{t1}, v{t0}, v{rc}")
    rne(dst, t1)

def cross_row_allreduce(vals, tmps):
    for sw in ("v_permlane32_swap_b32", "v_permlane16_swap_b32"):
        for a, t in zip(vals, tmps):
            I(f"v_mov_b32 v{t}, v{a}")
        I("s_nop 1")
        for a, t in zip(vals, tmps):
            I(f"{sw} v{a}, v{t}")
        I("s_nop 0")
        for a, t in zip(vals, tmps):
            I(f"v_add_f32 v{a}, v{a}, v{t}")

LQ, LM, LL, LO, LY = 0, 4096, 4224, 4352, 20736
FP, FH, FY = 37120, 53504, 53760
LDS1 = 86528

ACC = 8
SC = 16
VM, VMC, VL, VA = 24, 25, 26, 27
KB = [64, 128]
VB = [96, 160]
WR = 192

def issue_block(R, sb, nt):
    for t in range(8):
        I(f"global_load_dwordx4 v[{R+4*t}:{R+4*t+3}], v3, s[{sb}:{sb+1}] offset:{t*1024-4096}{nt}")

def adv(sb):
    I(f"s_add_u32 s{sb}, s{sb}, 65536")
    I(f"s_addc_u32 s{sb+1}, s{sb+1}, 0")

def consume_bcast(R, src, accb, t0):
    for t in range(8):
        for r in range(4):
            I(f"v_lshlrev_b32 v{16+2*r}, 16, v{R+4*t+r}")
            I(f"v_and_b32 v{16+2*r+1}, s29, v{R+4*t+r}")
        for j in range(8):
            I(f"v_fmac_f32_dpp v{accb+j}, v{src}, v{16+j} row_newbcast:{t0+t}{DPPM}")

def consume_K_dots(R):
    for r in range(4):
        for t in range(8):
            c = "0" if r == 0 else f"v{SC+t}"
            I(f"v_dot2_f32_bf16 v{SC+t}, v{R+4*t+r}, v{4+r}, {c}")

def consume_K_rest():
    for ctl in ("quad_perm:[1,0,3,2]", "quad_perm:[2,3,0,1]", "row_half_mirror", "row_mirror"):
        for t in range(8):
            I(f"v_add_f32_dpp v{SC+t}, v{SC+t}, v{SC+t} {ctl}{DPPM}")
    I(f"v_max3_f32 v{VA}, v{SC}, v{SC+1}, v{SC+2}")
    I(f"v_max3_f32 v{VA}, v{VA}, v{SC+3}, v{SC+4}")
    I(f"v_max3_f32 v{VA}, v{VA}, v{SC+5}, v{SC+6}")
    I(f"v_max3_f32 v{VM}, v{VA}, v{SC+7}, v{VM}")
    I(f"v_mul_f32 v28, s28, v{VM}")
    I(f"v_sub_f32 v{VA}, v{VMC}, v28")
    I(f"v_exp_f32 v{VA}, v{VA}")
    I(f"v_mov_b32 v{VMC}, v28")
    for t in range(8):
        I(f"v_fma_f32 v{SC+t}, v{SC+t}, s28, -v28")
    for t in range(8):
        I(f"v_exp_f32 v{SC+t}, v{SC+t}")
    I(f"v_mul_f32 v{VL}, v{VL}, v{VA}")
    for j in range(8):
        I(f"v_mul_f32 v{ACC+j}, v{ACC+j}, v{VA}")
    for t in range(8):
        I(f"v_add_f32 v{VL}, v{VL}, v{SC+t}")

def consume_V(R):
    for t in range(8):
        for rr in range(2):
            r0 = 2 * rr
            I(f"v_lshlrev_b32 v28, 16, v{R+4*t+r0}")
            I(f"v_and_b32 v29, s29, v{R+4*t+r0}")
            I(f"v_lshlrev_b32 v30, 16, v{R+4*t+r0+1}")
            I(f"v_and_b32 v31, s29, v{R+4*t+r0+1}")
            for k in range(4):
                I(f"v_fmac_f32 v{ACC+2*r0+k}, v{SC+t}, v{28+k}")

_lab = [0]
def newlab(p):
    _lab[0] += 1
    return f"L_{p}_{_lab[0]}"

def dyn_wait(cases):
    for T, cnt in cases:
        if T is None:
            I(f"s_waitcnt vmcnt({cnt})")
        else:
            lb = newlab("w")
            I(f"s_cmp_gt_u32 s40, {T}")
            I(f"s_cbranch_scc1 {lb}")
            I(f"s_waitcnt vmcnt({cnt})")
            LB(lb)

def cross_row(vals, tmps, op):
    for sw in ("v_permlane32_swap_b32", "v_permlane16_swap_b32"):
        for a, t in zip(vals, tmps):
            I(f"v_mov_b32 v{t}, v{a}")
        I("s_nop 1")
        for a, t in zip(vals, tmps):
            I(f"{sw} v{a}, v{t}")
        I("s_nop 0")
        for a, t in zip(vals, tmps):
            I(f"{op} v{a}, v{a}, v{t}")

def gen_k1():
    L.append(f".globl {K1}")
    L.append(".p2align 8")
    L.append(f".type {K1},@function")
    LB(K1)
    stamp(0)
    I("s_setprio 3")
    I("s_load_dwordx4 s[4:7], s[0:1], 0")
    I("s_load_dwordx4 s[8:11], s[0:1], 16")
    I("s_load_dwordx2 s[12:13], s[0:1], 32")
    I("s_load_dwordx2 s[14:15], s[0:1], 88")
    I("s_load_dwordx4 s[44:47], s[0:1], 48")
    I("s_load_dwordx2 s[48:49], s[0:1], 64")
    I(f"s_cmp_ge_u32 s2, {NATT}")
    I("s_cbranch_scc1 L_k1_end")
    I("v_readfirstlane_b32 s19, v0")
    I("v_and_b32 v1, 63, v0")
    I("v_lshlrev_b32 v2, 4, v1")
    I("s_lshr_b32 s19, s19, 6")
    I(f"s_mov_b32 s28, 0x{f2u(C_SCALE):08x}")
    I("s_mov_b32 s29, 0xffff0000")
    I("s_and_b32 s17, s2, 7")
    I("s_lshr_b32 s3, s2, 3")
    I("s_and_b32 s3, s3, 3")
    I("s_lshl_b32 s3, s3, 3")
    I("s_add_u32 s17, s17, s3")
    I("s_lshr_b32 s3, s2, 5")
    I("s_lshr_b32 s16, s3, 2")
    I("s_and_b32 s18, s3, 3")
    I("s_lshl_b32 s34, s16, 5")
    I("s_add_u32 s34, s34, s17")
    I("s_and_b32 s3, s2, 31")
    I("s_lshl_b32 s42, s16, 5")
    I("s_add_u32 s42, s42, s3")
    I("s_mul_i32 s38, s18, 67")
    I("s_sub_u32 s38, s38, 11")
    I("s_mov_b32 s39, 67")
    I("s_cmp_eq_u32 s18, 3")
    I("s_cselect_b32 s39, 66, s39")
    I("s_cmp_eq_u32 s18, 0")
    I("s_cselect_b32 s38, 0, s38")
    I("s_cselect_b32 s39, 56, s39")
    I("s_cselect_b32 s41, 1, 0")
    I("s_lshl_b32 s36, s18, 6")
    I(f"s_cmp_lt_u32 s42, {NFFN}")
    I("s_cselect_b32 s38, s38, s36")
    I("s_cselect_b32 s39, s39, 64")
    I("s_cselect_b32 s41, s41, 0")
    I("s_sub_u32 s40, s39, s19")
    I("s_add_u32 s40, s40, 7")
    I("s_lshr_b32 s40, s40, 3")
    I("s_lshl_b32 s35, s34, 21")
    I("s_lshl_b32 s36, s38, 13")
    I("s_add_u32 s35, s35, s36")
    I("s_lshl_b32 s36, s19, 13")
    I("s_add_u32 s36, s36, 4096")
    I("v_add_u32 v3, s36, v2")
    I("v_lshrrev_b32 v28, 4, v1")
    I("v_and_b32 v29, 15, v1")
    I("v_lshlrev_b32 v26, 13, v28")
    I("v_lshl_add_u32 v26, v29, 4, v26")
    I("s_lshl_b32 s36, s19, 19")
    I("v_add_u32 v26, s36, v26")
    I("v_lshl_add_u32 v27, v29, 2, v28")
    I("s_lshl_b32 s36, s19, 6")
    I("v_add_u32 v27, s36, v27")
    I("v_lshlrev_b32 v27, 1, v27")
    I("v_lshrrev_b32 v61, 2, v1")
    I("v_add_u32 v61, s36, v61")
    I("v_and_b32 v62, 3, v1")
    I("s_mov_b32 s37, 2752")
    I("v_mul_lo_u32 v63, v61, s37")
    I("v_lshl_add_u32 v63, v62, 4, v63")
    I("v_lshlrev_b32 v61, 1, v61")
    I("s_lshl_b32 s37, s16, 10")
    I("s_lshl_b32 s38, s17, 8")
    I("s_lshl_b32 s39, s17, 17")
    I("s_waitcnt lgkmcnt(0)")
    I("s_add_u32 s24, s4, s37")
    I("s_addc_u32 s25, s5, 0")
    I("global_load_dwordx4 v[16:19], v2, s[24:25]")
    I("global_load_ushort v24, v27, s[24:25]")
    I("s_add_u32 s24, s10, s38")
    I("s_addc_u32 s25, s11, 0")
    I("s_add_u32 s20, s6, s35")
    I("s_addc_u32 s21, s7, 0")
    I("s_add_u32 s22, s8, s35")
    I("s_addc_u32 s23, s9, 0")
    I("s_add_u32 s26, s12, s39")
    I("s_addc_u32 s27, s13, 0")
    for t in range(16):
        R = WR + 4 * t
        I(f"global_load_dwordx4 v[{R}:{R+3}], v26, s[24:25]")
        if t != 15:
            I("s_add_u32 s24, s24, 32768")
            I("s_addc_u32 s25, s25, 0")
    I("s_setprio 0")
    issue_block(KB[0], 20, NT); adv(20)
    issue_block(VB[0], 22, NT); adv(22)
    I("s_cmp_eq_u32 s41, 0")
    I("s_cbranch_scc1 L_noduty1")
    I("s_lshl_b32 s38, s42, 6")
    I("s_lshl_b32 s39, s42, 15")
    I("s_lshl_b32 s36, s19, 12")
    I("s_add_u32 s39, s39, s36")
    I("s_add_u32 s44, s44, s38")
    I("s_addc_u32 s45, s45, 0")
    I("s_add_u32 s46, s46, s38")
    I("s_addc_u32 s47, s47, 0")
    I("s_add_u32 s48, s48, s39")
    I("s_addc_u32 s49, s49, 0")
    for t in range(4):
        I(f"global_load_dwordx4 v[{128+4*t}:{131+4*t}], v63, s[44:45]")
        I(f"global_load_dwordx4 v[{144+4*t}:{147+4*t}], v63, s[46:47]")
        if t != 3:
            I("s_add_u32 s44, s44, 44032")
            I("s_addc_u32 s45, s45, 0")
            I("s_add_u32 s46, s46, 44032")
            I("s_addc_u32 s47, s47, 0")
    for t in range(4):
        I(f"global_load_dwordx4 v[{160+4*t}:{163+4*t}], v2, s[48:49] offset:{1024*t}")
    I("global_load_dwordx4 v[40:43], v2, s[4:5]")
    I("global_load_dwordx4 v[44:47], v2, s[4:5] offset:1024")
    I("global_load_dwordx4 v[176:179], v2, s[4:5]")
    I("global_load_dwordx4 v[180:183], v2, s[4:5]")
    I("s_branch L_join1")
    LB("L_noduty1")
    issue_block(KB[1], 20, NT); adv(20)
    issue_block(VB[1], 22, NT); adv(22)
    LB("L_join1")
    I("s_waitcnt vmcnt(48)")
    ln_stats(16, [20, 21, 22, 23, 28, 29, 30, 31], 27, 26, 4, 5, 6)
    ln_apply(25, 24, 4, 5, 6, 27, 26)
    for j in range(8):
        I(f"v_mov_b32 v{ACC+j}, 0")
    I("s_waitcnt vmcnt(40)")
    consume_bcast(WR, 25, ACC, 0)
    I("s_waitcnt vmcnt(32)")
    consume_bcast(WR + 32, 25, ACC, 8)
    cross_row([ACC + j for j in range(8)], [16 + j for j in range(8)], "v_add_f32")
    I("v_and_b32 v29, 15, v1")
    I("v_lshlrev_b32 v28, 5, v29")
    I("s_lshl_b32 s36, s19, 9")
    I("v_add_u32 v30, s36, v28")
    I(f"ds_write_b128 v30, v[8:11] offset:{LQ}")
    I(f"ds_write_b128 v30, v[12:15] offset:{LQ+16}")
    I("s_waitcnt lgkmcnt(0)")
    I("s_barrier")
    for k in range(8):
        I(f"ds_read_b128 v[{WR+8*k}:{WR+8*k+3}], v28 offset:{LQ+512*k}")
        I(f"ds_read_b128 v[{WR+8*k+4}:{WR+8*k+7}], v28 offset:{LQ+512*k+16}")
    I("s_waitcnt lgkmcnt(0)")
    for j in range(8):
        I(f"v_add_f32 v{8+j}, v{WR+j}, v{WR+8+j}")
    for k in range(2, 8):
        for j in range(8):
            I(f"v_add_f32 v{8+j}, v{8+j}, v{WR+8*k+j}")
    for r in range(4):
        I(f"v_cvt_pk_bf16_f32 v{4+r}, v{8+2*r}, v{8+2*r+1}")
    I("s_cmp_eq_u32 s41, 0")
    I("s_cbranch_scc1 L_noduty2")
    for b in range(2):
        for t in range(4):
            I(f"global_load_ushort v{32+4*b+t}, v61, s[4:5] offset:{1024*b+32*t}")
    I("s_waitcnt vmcnt(0)")
    e = list(range(48, 56))
    for b in range(2):
        ln_stats(40 + 4 * b, e, 56, 57, 58, 59, 60)
        for t in range(4):
            ln_apply(32 + 4 * b + t, 32 + 4 * b + t, 58, 59, 60, 56, 57)
    for k in range(32):
        I(f"v_mov_b32 v{192+k}, 0")
    for t in range(4):
        for r in range(4):
            I(f"v_lshlrev_b32 v{224+2*r}, 16, v{128+4*t+r}")
            I(f"v_and_b32 v{225+2*r}, s29, v{128+4*t+r}")
            I(f"v_lshlrev_b32 v{232+2*r}, 16, v{144+4*t+r}")
            I(f"v_and_b32 v{233+2*r}, s29, v{144+4*t+r}")
        for b in range(2):
            for j in range(8):
                I(f"v_fmac_f32 v{192+8*b+j}, v{32+4*b+t}, v{224+j}")
                I(f"v_fmac_f32 v{208+8*b+j}, v{32+4*b+t}, v{232+j}")
    I("s_nop 1")
    for ctl in ("row_ror:4", "row_ror:8"):
        for k in range(32):
            I(f"v_add_f32_dpp v{192+k}, v{192+k}, v{192+k} {ctl}{DPPM}")
    I("v_lshrrev_b32 v63, 4, v1")
    I("s_lshl_b32 s36, s19, 2")
    I("v_add_u32 v63, s36, v63")
    I("v_lshlrev_b32 v63, 9, v63")
    I("v_lshl_add_u32 v63, v62, 5, v63")
    for mat in range(2):
        for b in range(2):
            r = 192 + 16 * mat + 8 * b
            I(f"ds_write_b128 v63, v[{r}:{r+3}] offset:{FP+256*mat+128*b}")
            I(f"ds_write_b128 v63, v[{r+4}:{r+7}] offset:{FP+256*mat+128*b+16}")
    I("s_waitcnt lgkmcnt(0)")
    I("s_barrier")
    I("s_cmp_lg_u32 s19, 0")
    I("s_cbranch_scc1 L_ffn_skip")
    I("v_lshlrev_b32 v63, 2, v1")
    for half in range(2):
        for k in range(16):
            st = 16 * half + k
            I(f"ds_read_b32 v{192+k}, v63 offset:{FP+512*st}")
            I(f"ds_read_b32 v{208+k}, v63 offset:{FP+512*st+256}")
        I("s_waitcnt lgkmcnt(0)")
        if half == 0:
            I("v_add_f32 v56, v192, v193")
            I("v_add_f32 v57, v208, v209")
            rng = range(2, 16)
        else:
            rng = range(0, 16)
        for k in rng:
            I(f"v_add_f32 v56, v56, v{192+k}")
            I(f"v_add_f32 v57, v57, v{208+k}")
    rne(56, 56)
    rne(57, 57)
    k0 = math.sqrt(2.0 / math.pi)
    I("v_mul_f32 v58, v56, v56")
    I(f"v_mul_f32 v58, 0x{f2u(0.044715):08x}, v58")
    I("v_add_f32 v58, 1.0, v58")
    I("v_mul_f32 v58, v58, v56")
    I(f"v_mul_f32 v58, 0x{f2u(-2.0*k0*math.log2(math.e)):08x}, v58")
    I("v_exp_f32 v58, v58")
    I("s_nop 0")
    I("v_add_f32 v58, 1.0, v58")
    I("v_rcp_f32 v58, v58")
    I("s_nop 0")
    I("v_mul_f32 v58, v58, v56")
    rne(58, 58)
    I("v_mul_f32 v58, v58, v57")
    rne(58, 58)
    I(f"ds_write_b32 v63, v58 offset:{FH}")
    I("s_waitcnt lgkmcnt(0)")
    LB("L_ffn_skip")
    I("s_barrier")
    I("s_lshl_b32 s36, s19, 4")
    I("v_mov_b32 v63, s36")
    I(f"ds_read_b128 v[32:35], v63 offset:{FH}")
    I(f"ds_read_b128 v[36:39], v63 offset:{FH+128}")
    for k in range(16):
        I(f"v_mov_b32 v{192+k}, 0")
    I("s_waitcnt lgkmcnt(0)")
    for t in range(4):
        for r in range(4):
            I(f"v_lshlrev_b32 v{224+2*r}, 16, v{160+4*t+r}")
            I(f"v_and_b32 v{225+2*r}, s29, v{160+4*t+r}")
        for b in range(2):
            for j in range(8):
                I(f"v_fmac_f32 v{192+8*b+j}, v{32+4*b+t}, v{224+j}")
    issue_block(KB[1], 20, NT); adv(20)
    issue_block(VB[1], 22, NT); adv(22)
    I("v_lshlrev_b32 v63, 5, v1")
    I("s_lshl_b32 s36, s19, 12")
    I(f"s_add_u32 s36, s36, {FY}")
    I("v_add_u32 v63, s36, v63")
    for b in range(2):
        I(f"ds_write_b128 v63, v[{192+8*b}:{195+8*b}] offset:{2048*b}")
        I(f"ds_write_b128 v63, v[{196+8*b}:{199+8*b}] offset:{2048*b+16}")
    I("v_lshlrev_b32 v62, 2, v0")
    I(f"v_add_u32 v61, {FY}, v62")
    I("s_lshl_b32 s36, s42, 12")
    I(f"s_add_u32 s36, s36, {WS_F}")
    I("s_add_u32 s44, s14, s36")
    I("s_addc_u32 s45, s15, 0")
    I("s_waitcnt lgkmcnt(0)")
    I("s_barrier")
    for b in range(2):
        for k in range(8):
            I(f"ds_read_b32 v{208+8*b+k}, v61 offset:{4096*k+2048*b}")
    I("s_waitcnt lgkmcnt(0)")
    for b in range(2):
        I(f"v_add_f32 v{56+b}, v{208+8*b}, v{209+8*b}")
        for k in range(2, 8):
            I(f"v_add_f32 v{56+b}, v{56+b}, v{208+8*b+k}")
    I("global_store_dword v62, v56, s[44:45]")
    I("global_store_dword v62, v57, s[44:45] offset:2048")
    LB("L_noduty2")
    issue_block(WR, 26, ""); adv(26)
    issue_block(WR + 32, 26, "")
    for j in range(8):
        I(f"v_mov_b32 v{ACC+j}, 0")
    I(f"v_mov_b32 v{VM}, 0xff800000")
    I(f"v_mov_b32 v{VMC}, 0xff800000")
    I(f"v_mov_b32 v{VL}, 0")
    stamp(1)
    for n in range(9):
        kb, vb = KB[n % 2], VB[n % 2]
        X = 16 if n < 2 else 0
        if n >= 7:
            I(f"s_cmp_le_u32 s40, {n}")
            I("s_cbranch_scc1 L_epi")
        if PRIO and n % 2 == 0 and n < 8:
            I(f"s_setprio {3 - n // 2}")
        if n <= 5:
            dyn_wait([(None, 24 + X)])
        elif n <= 7:
            dyn_wait([(n + 1, 8), (None, 24)])
        else:
            dyn_wait([(None, 8)])
        consume_K_dots(kb)
        if n + 2 <= 6:
            issue_block(kb, 20, NT); adv(20)
        elif n + 2 <= 8:
            lb = newlab("i")
            I(f"s_cmp_le_u32 s40, {n+2}")
            I(f"s_cbranch_scc1 {lb}")
            issue_block(kb, 20, NT); adv(20)
            LB(lb)
        consume_K_rest()
        if n <= 4:
            dyn_wait([(None, 24 + X)])
        elif n == 5:
            dyn_wait([(7, 16), (None, 24)])
        elif n == 6:
            dyn_wait([(7, 0), (8, 16), (None, 24)])
        elif n == 7:
            dyn_wait([(8, 0), (None, 16)])
        else:
            dyn_wait([(None, 0)])
        consume_V(vb)
        if n + 2 <= 6:
            issue_block(vb, 22, NT); adv(22)
        elif n + 2 <= 8:
            lb = newlab("i")
            I(f"s_cmp_le_u32 s40, {n+2}")
            I(f"s_cbranch_scc1 {lb}")
            issue_block(vb, 22, NT); adv(22)
            LB(lb)
    LB("L_epi")
    stamp(2)
    I("v_lshrrev_b32 v28, 4, v1")
    I("v_and_b32 v29, 15, v1")
    I("v_lshlrev_b32 v30, 2, v28")
    I("s_lshl_b32 s36, s19, 4")
    I("v_add_u32 v30, s36, v30")
    I(f"ds_write_b32 v30, v{VMC} offset:{LM}")
    I(f"ds_write_b32 v30, v{VL} offset:{LL}")
    I("v_lshlrev_b32 v31, 7, v30")
    I("v_lshl_add_u32 v31, v29, 5, v31")
    I(f"ds_write_b128 v31, v[8:11] offset:{LO}")
    I(f"ds_write_b128 v31, v[12:15] offset:{LO+16}")
    I("v_and_b32 v30, 7, v29")
    I("v_lshrrev_b32 v31, 3, v29")
    I("v_lshl_add_u32 v30, v31, 6, v30")
    I("s_lshl_b32 s36, s19, 3")
    I("v_add_u32 v30, s36, v30")
    I("v_lshlrev_b32 v30, 2, v30")
    I("v_lshl_add_u32 v30, v28, 12, v30")
    I("v_lshlrev_b32 v31, 5, v28")
    for j in range(8):
        I(f"v_mov_b32 v{ACC+j}, 0")
    I("s_waitcnt lgkmcnt(0)")
    I("s_barrier")
    I(f"ds_read_b128 v[32:35], v31 offset:{LM}")
    I(f"ds_read_b128 v[36:39], v31 offset:{LM+16}")
    for k in range(8):
        I(f"ds_read_b32 v{40+k}, v30 offset:{LO+512*k}")
    I(f"ds_read_b128 v[48:51], v31 offset:{LL}")
    I(f"ds_read_b128 v[52:55], v31 offset:{LL+16}")
    I("s_waitcnt lgkmcnt(10)")
    I("v_max3_f32 v16, v32, v33, v34")
    I("v_max3_f32 v16, v16, v35, v36")
    I("v_max3_f32 v16, v16, v37, v38")
    I("v_max_f32 v16, v16, v39")
    cross_row([16], [17], "v_max_f32")
    for k in range(8):
        I(f"v_sub_f32 v{32+k}, v{32+k}, v16")
    for k in range(8):
        I(f"v_exp_f32 v{32+k}, v{32+k}")
    I("s_waitcnt lgkmcnt(2)")
    I("v_mul_f32 v17, v32, v40")
    for k in range(1, 8):
        I(f"v_fmac_f32 v17, v{32+k}, v{40+k}")
    cross_row([17], [18], "v_add_f32")
    I("v_cvt_pk_bf16_f32 v18, v17, 0")
    I("v_lshlrev_b32 v19, 16, v18")
    I("s_waitcnt vmcnt(0)")
    I("s_nop 0")
    for t in range(16):
        for r in range(4):
            I(f"v_dot2c_f32_bf16_dpp v{8+2*r}, v18, v{WR+4*t+r} row_newbcast:{t}{DPPM}")
            I(f"v_dot2c_f32_bf16_dpp v{8+2*r+1}, v19, v{WR+4*t+r} row_newbcast:{t}{DPPM}")
    I("v_lshlrev_b32 v30, 5, v1")
    I("s_lshl_b32 s36, s19, 11")
    I("v_add_u32 v30, s36, v30")
    I("v_lshlrev_b32 v31, 2, v0")
    I(f"ds_write_b128 v30, v[8:11] offset:{LY}")
    I(f"ds_write_b128 v30, v[12:15] offset:{LY+16}")
    I("s_lshl_b32 s36, s34, 2")
    I("s_add_u32 s36, s36, s18")
    I("s_lshl_b32 s37, s36, 11")
    I("s_add_u32 s44, s14, s37")
    I("s_addc_u32 s45, s15, 0")
    I("s_waitcnt lgkmcnt(0)")
    I("s_barrier")
    for k in range(8):
        I(f"ds_read_b32 v{40+k}, v31 offset:{LY+2048*k}")
    I("s_waitcnt lgkmcnt(0)")
    I("v_add_f32 v20, v40, v41")
    for k in range(2, 8):
        I(f"v_add_f32 v20, v20, v{40+k}")
    I("global_store_dword v31, v20, s[44:45]")
    I("s_cmp_lg_u32 s19, 0")
    I("s_cbranch_scc1 L_k1_end")
    I("v_mul_f32 v17, v32, v48")
    for k in range(1, 8):
        I(f"v_fmac_f32 v17, v{32+k}, v{48+k}")
    cross_row([17], [18], "v_add_f32")
    I("s_lshl_b32 s37, s36, 3")
    I(f"s_add_u32 s37, s37, {WS_ML}")
    I("s_add_u32 s44, s14, s37")
    I("s_addc_u32 s45, s15, 0")
    I("v_mov_b32 v31, 0")
    I("v_cmp_eq_u32 vcc, 0, v1")
    I("s_and_saveexec_b64 s[46:47], vcc")
    I("global_store_dwordx2 v31, v[16:17], s[44:45]")
    if INSTR:
        stamp(3)
        I("s_getreg_b32 s58, hwreg(HW_REG_XCC_ID)")
        I("s_getreg_b32 s59, hwreg(HW_REG_HW_ID)")
        I("s_waitcnt lgkmcnt(0)")
        I("s_lshl_b32 s37, s2, 6")
        I("s_add_u32 s37, s37, 0x200000")
        I("s_add_u32 s44, s14, s37")
        I("s_addc_u32 s45, s15, 0")
        for k in range(10):
            I(f"v_mov_b32 v{96+k}, s{50+k}")
        I("global_store_dwordx4 v31, v[96:99], s[44:45]")
        I("global_store_dwordx4 v31, v[100:103], s[44:45] offset:16")
        I("global_store_dwordx2 v31, v[104:105], s[44:45] offset:32")
    LB("L_k1_end")
    I("s_endpgm")


def gen_k2():
    L.append(f".globl {K2}")
    L.append(".p2align 8")
    L.append(f".type {K2},@function")
    LB(K2)
    I("s_load_dwordx2 s[4:5], s[0:1], 0")
    I("s_load_dwordx2 s[6:7], s[0:1], 72")
    I("s_load_dwordx2 s[8:9], s[0:1], 88")
    I("s_cmp_ge_u32 s2, 16")
    I("s_cbranch_scc1 L_k2_end")
    I("s_lshr_b32 s16, s2, 3")
    I("s_and_b32 s17, s2, 7")
    I(f"s_mov_b32 s28, 0x{f2u(C_SCALE):08x}")
    I("v_and_b32 v1, 15, v0")
    I("v_lshrrev_b32 v2, 4, v0")
    I("s_lshl_b32 s18, s16, 7")
    I("v_lshlrev_b32 v3, 3, v2")
    I("v_add_u32 v3, s18, v3")
    I("v_lshlrev_b32 v4, 11, v3")
    I("s_lshl_b32 s19, s17, 8")
    I("v_lshl_add_u32 v5, v1, 4, s19")
    I("v_add_u32 v4, v4, v5")
    I("v_lshlrev_b32 v6, 3, v3")
    I("s_lshl_b32 s18, s16, 11")
    I("v_lshl_add_u32 v7, v2, 12, s18")
    I("v_add_u32 v7, v7, v5")
    I("s_waitcnt lgkmcnt(0)")
    I(f"s_add_u32 s10, s8, {WS_ML}")
    I("s_addc_u32 s11, s9, 0")
    I(f"s_add_u32 s12, s8, {WS_F}")
    I("s_addc_u32 s13, s9, 0")
    I(f"s_mov_b32 s14, {NFFN*4096}")
    I("s_mov_b32 s15, 0x00020000")
    for k in range(4):
        I(f"global_load_dwordx4 v[{16+4*k}:{19+4*k}], v6, s[10:11] offset:{16*k}")
    I("v_add_u32 v8, 0x2000, v4")
    for k in range(8):
        base = 4 if k < 4 else 8
        off = (k % 4) * 2048
        if off >= 4096:
            off -= 8192
            base = 8 if k < 4 else None
        if base is None:
            I(f"global_load_dwordx4 v[{32+4*k}:{35+4*k}], v9, s[8:9] offset:{off}")
        else:
            I(f"global_load_dwordx4 v[{32+4*k}:{35+4*k}], v{base}, s[8:9] offset:{off}")
        if k == 0:
            I("v_add_u32 v9, 0x4000, v4")
    I("v_add_u32 v10, 0x10000, v7")
    I("v_add_u32 v11, 0x20000, v7")
    I("buffer_load_dwordx4 v[64:67], v7, s[12:15], 0 offen")
    I("buffer_load_dwordx4 v[68:71], v10, s[12:15], 0 offen")
    I("buffer_load_dwordx4 v[72:75], v11, s[12:15], 0 offen")
    I("s_waitcnt vmcnt(11)")
    for hh in range(2):
        b0 = 16 + 8 * hh
        I(f"v_max3_f32 v12, v{b0}, v{b0+2}, v{b0+4}")
        I(f"v_max_f32 v12, v12, v{b0+6}")
        for s in range(4):
            I(f"v_sub_f32 v{b0+2*s}, v{b0+2*s}, v12")
            I(f"v_exp_f32 v{b0+2*s}, v{b0+2*s}")
        I("s_nop 0")
        I(f"v_mul_f32 v13, v{b0}, v{b0+1}")
        for s in range(1, 4):
            I(f"v_fmac_f32 v13, v{b0+2*s}, v{b0+2*s+1}")
        I("v_rcp_f32 v13, v13")
        I("s_nop 0")
        for s in range(4):
            I(f"v_mul_f32 v{b0+2*s}, v{b0+2*s}, v13")
    I("s_waitcnt vmcnt(3)")
    for j in range(4):
        I(f"v_mul_f32 v{12+j}, v16, v{32+j}")
    for k in range(1, 8):
        for j in range(4):
            I(f"v_fmac_f32 v{12+j}, v{16+2*k}, v{32+4*k+j}")
    I("s_waitcnt vmcnt(0)")
    for j in range(4):
        I(f"v_add_f32 v{64+j}, v{64+j}, v{68+j}")
        I(f"v_add_f32 v{64+j}, v{64+j}, v{72+j}")
    I("v_lshlrev_b32 v3, 8, v2")
    I("v_lshl_add_u32 v3, v1, 4, v3")
    I("ds_write_b128 v3, v[12:15]")
    I("ds_write_b128 v3, v[64:67] offset:4096")
    I("v_lshlrev_b32 v4, 2, v0")
    I("s_waitcnt lgkmcnt(0)")
    I("s_barrier")
    I("v_cmp_gt_u32 vcc, 64, v0")
    I("s_and_saveexec_b64 s[20:21], vcc")
    I("s_cbranch_execz L_k2_end")
    I("s_lshl_b32 s18, s16, 10")
    I("s_lshl_b32 s19, s17, 7")
    I("s_add_u32 s18, s18, s19")
    I("v_lshl_add_u32 v5, v0, 1, s18")
    I("global_load_ushort v6, v5, s[4:5]")
    for k in range(16):
        I(f"ds_read_b32 v{16+k}, v4 offset:{256*k}")
        I(f"ds_read_b32 v{32+k}, v4 offset:{4096+256*k}")
    I("s_waitcnt lgkmcnt(0)")
    I("v_add_f32 v8, v16, v17")
    I("v_add_f32 v9, v32, v33")
    for k in range(2, 16):
        I(f"v_add_f32 v8, v8, v{16+k}")
        I(f"v_add_f32 v9, v9, v{32+k}")
    rne(8, 8)
    rne(9, 9)
    I(f"v_mul_f32 v10, 0x{f2u(-math.log2(math.e)):08x}, v9")
    I("v_exp_f32 v10, v10")
    I("s_nop 0")
    I("v_add_f32 v10, 1.0, v10")
    I("v_rcp_f32 v10, v10")
    I("s_nop 0")
    I("v_mul_f32 v10, v10, v9")
    rne(10, 10)
    I("v_mul_f32 v10, v10, v8")
    rne(10, 10)
    I("s_waitcnt vmcnt(0)")
    I("v_lshlrev_b32 v6, 16, v6")
    I("v_add_f32 v10, v10, v6")
    I("v_cvt_pk_bf16_f32 v10, v10, v10")
    I("global_store_short v5, v10, s[6:7]")
    LB("L_k2_end")
    I("s_endpgm")


HDR = open(f"cdna_kernels/{NAME}.s.ref").read().split("; Override")[0]

out = []
out.append(HDR.rstrip("\n"))
out.append(f"; @launch kernel={K1} grid=({NATT},1,1) block=(512,1,1) lds={LDS1}")
out.append(f"; @launch kernel={K2} grid=(16,1,1) block=(256,1,1) lds=8192")
out.append('.amdgcn_target "amdgcn-amd-amdhsa--gfx950"')
out.append(".text")
gen_k1()
gen_k2()
out += L
out.append('.section .rodata,"a"')
for name, nv, ns in ((K1, 256, 64), (K2, 80, 32)):
    out.append(".p2align 6")
    out.append(f".amdhsa_kernel {name}")
    out.append(f"  .amdhsa_next_free_vgpr {nv}")
    out.append(f"  .amdhsa_next_free_sgpr {ns}")
    out.append(f"  .amdhsa_accum_offset {nv}")
    out.append("  .amdhsa_group_segment_fixed_size 0")
    out.append("  .amdhsa_kernarg_size 96")
    out.append("  .amdhsa_user_sgpr_count 2")
    out.append("  .amdhsa_user_sgpr_kernarg_segment_ptr 1")
    out.append("  .amdhsa_system_sgpr_workgroup_id_x 1")
    out.append("  .amdhsa_float_denorm_mode_32 3")
    out.append(".end_amdhsa_kernel")
dst = f"cdna_kernels/{NAME}.s"
for a in sys.argv[1:]:
    if a.startswith("out="):
        dst = a[4:]
open(dst, "w").write("\n".join(out) + "\n")
print("wrote", dst, len(out), "lines")
```

```python
import struct, sys

NAME = "recurrent_scan__gqa_block_cached__geglu_ffn__decode"
K1 = NAME + "_kernel"
K2 = "final_kernel"

NT = " nt"
MODE = "unroll"
INSTR = False
NOWQ = False
ROT = False
ND = 56
KPOL = None
VPOL = None
WNT = " nt"
PRIO = False
NOWO = False
for a in sys.argv[1:]:
    if a == "nont":
        NT = ""
    if a == "loop":
        MODE = "loop"
    if a == "instr":
        INSTR = True
    if a == "prio":
        PRIO = True
    if a.startswith("kpol="):
        KPOL = " " + a[5:].replace("+", " ") if a[5:] != "def" else ""
    if a.startswith("vpol="):
        VPOL = " " + a[5:].replace("+", " ") if a[5:] != "def" else ""
    if a.startswith("nd="):
        ND = int(a[3:])
    if a == "wdef":
        WNT = ""
    if a == "rot":
        ROT = True
    if a == "nowq":
        NOWQ = True
    if a == "nowo":
        NOWO = True

def f2u(x):
    return struct.unpack("<I", struct.pack("<f", x))[0]

import math
C_SCALE = (128 ** -0.5) * math.log2(math.e)

L = []
def I(s): L.append("    " + s)
def LB(s): L.append(s + ":")
def CM(s): L.append("    ; " + s)

DPPM = " row_mask:0xf bank_mask:0xf"

LQ, LM, LL, LO, LY = 0, 4096, 4224, 4352, 20736
FP, FH, FY = 0, 16384, 16640
LDS1 = 50176

WS_Y = 0
WS_ML = 524288
WS_F = 1048576

NFFN = 43
NATT = 256

def stamp(k):
    if INSTR:
        I(f"s_memrealtime s[{64+2*k}:{65+2*k}]")

def allreduce64(v):
    I("s_nop 1")
    I(f"v_add_f32_dpp v{v}, v{v}, v{v} quad_perm:[1,0,3,2]{DPPM}")
    I("s_nop 1")
    I(f"v_add_f32_dpp v{v}, v{v}, v{v} quad_perm:[2,3,0,1]{DPPM}")
    I("s_nop 1")
    I(f"v_add_f32_dpp v{v}, v{v}, v{v} row_half_mirror{DPPM}")
    I("s_nop 1")
    I(f"v_add_f32_dpp v{v}, v{v}, v{v} row_mirror{DPPM}")
    I("s_nop 0")
    I(f"v_readlane_b32 s30, v{v}, 0")
    I(f"v_readlane_b32 s31, v{v}, 16")
    I(f"v_readlane_b32 s32, v{v}, 32")
    I(f"v_readlane_b32 s33, v{v}, 48")
    I("s_nop 1")
    I(f"v_mov_b32 v{v}, s30")
    I(f"v_add_f32 v{v}, s31, v{v}")
    I(f"v_add_f32 v{v}, s32, v{v}")
    I(f"v_add_f32 v{v}, s33, v{v}")

def rne(dst, src):
    I(f"v_cvt_pk_bf16_f32 v{dst}, v{src}, v{src}")
    I(f"v_and_b32 v{dst}, 0xffff0000, v{dst}")

def ln_stats(xr, e, t0, t1, mbf, sd, rc):
    for r in range(4):
        I(f"v_lshlrev_b32 v{e[2*r]}, 16, v{xr+r}")
        I(f"v_and_b32 v{e[2*r+1]}, 0xffff0000, v{xr+r}")
    I(f"v_add_f32 v{t0}, v{e[0]}, v{e[1]}")
    for k in range(2, 8):
        I(f"v_add_f32 v{t0}, v{t0}, v{e[k]}")
    allreduce64(t0)
    I(f"v_mul_f32 v{t0}, 0x{f2u(1.0/512):08x}, v{t0}")
    for k in range(8):
        I(f"v_sub_f32 v{e[k]}, v{e[k]}, v{t0}")
    I(f"v_mul_f32 v{t1}, v{e[0]}, v{e[0]}")
    for k in range(1, 8):
        I(f"v_fmac_f32 v{t1}, v{e[k]}, v{e[k]}")
    allreduce64(t1)
    I(f"v_mul_f32 v{t1}, 0x{f2u(1.0/512):08x}, v{t1}")
    rne(mbf, t0)
    rne(t1, t1)
    I(f"v_add_f32 v{t1}, 0x{f2u(1e-5):08x}, v{t1}")
    rne(t1, t1)
    I(f"v_sqrt_f32 v{t1}, v{t1}")
    I("s_nop 0")
    rne(sd, t1)
    I(f"v_rcp_f32 v{rc}, v{sd}")
    I("s_nop 0")

def ln_apply(dst, xe, mbf, sd, rc, t0, t1):
    I(f"v_lshlrev_b32 v{t0}, 16, v{xe}")
    I(f"v_sub_f32 v{t0}, v{t0}, v{mbf}")
    rne(t0, t0)
    I(f"v_mul_f32 v{t1}, v{t0}, v{rc}")
    I(f"v_fma_f32 v{t0}, -v{t1}, v{sd}, v{t0}")
    I(f"v_fmac_f32 v{t1}, v{t0}, v{rc}")
    rne(dst, t1)

def cross_row_allreduce(vals, tmps):
    for sw in ("v_permlane32_swap_b32", "v_permlane16_swap_b32"):
        for a, t in zip(vals, tmps):
            I(f"v_mov_b32 v{t}, v{a}")
        I("s_nop 1")
        for a, t in zip(vals, tmps):
            I(f"{sw} v{a}, v{t}")
        I("s_nop 0")
        for a, t in zip(vals, tmps):
            I(f"v_add_f32 v{a}, v{a}, v{t}")

LQ, LM, LL, LO, LY = 0, 4096, 4224, 4352, 20736
FP, FH, FY = 37120, 53504, 53760
LDS1 = 86528

ACC = 8
SC = 16
VM, VMC, VL, VA = 24, 25, 26, 27
KB = [64, 128]
VB = [96, 160]
WR = 192

def issue_block(R, sb, nt):
    if sb == 20 and KPOL is not None:
        nt = KPOL
    if sb == 22 and VPOL is not None:
        nt = VPOL
    for t in range(8):
        I(f"global_load_dwordx4 v[{R+4*t}:{R+4*t+3}], v3, s[{sb}:{sb+1}] offset:{t*1024-4096}{nt}")

def adv(sb):
    I(f"s_add_u32 s{sb}, s{sb}, 65536")
    I(f"s_addc_u32 s{sb+1}, s{sb+1}, 0")

def consume_bcast(R, src, accb, t0):
    for t in range(8):
        for r in range(4):
            I(f"v_lshlrev_b32 v{16+2*r}, 16, v{R+4*t+r}")
            I(f"v_and_b32 v{16+2*r+1}, s29, v{R+4*t+r}")
        for j in range(8):
            I(f"v_fmac_f32_dpp v{accb+j}, v{src}, v{16+j} row_newbcast:{t0+t}{DPPM}")

def consume_K_dots(R):
    for r in range(4):
        for t in range(8):
            c = "0" if r == 0 else f"v{SC+t}"
            I(f"v_dot2_f32_bf16 v{SC+t}, v{R+4*t+r}, v{4+r}, {c}")

def consume_K_rest():
    for ctl in ("quad_perm:[1,0,3,2]", "quad_perm:[2,3,0,1]", "row_half_mirror", "row_mirror"):
        for t in range(8):
            I(f"v_add_f32_dpp v{SC+t}, v{SC+t}, v{SC+t} {ctl}{DPPM}")
    I(f"v_max3_f32 v{VA}, v{SC}, v{SC+1}, v{SC+2}")
    I(f"v_max3_f32 v{VA}, v{VA}, v{SC+3}, v{SC+4}")
    I(f"v_max3_f32 v{VA}, v{VA}, v{SC+5}, v{SC+6}")
    I(f"v_max3_f32 v{VM}, v{VA}, v{SC+7}, v{VM}")
    I(f"v_mul_f32 v28, s28, v{VM}")
    I(f"v_sub_f32 v{VA}, v{VMC}, v28")
    I(f"v_exp_f32 v{VA}, v{VA}")
    I(f"v_mov_b32 v{VMC}, v28")
    for t in range(8):
        I(f"v_fma_f32 v{SC+t}, v{SC+t}, s28, -v28")
    for t in range(8):
        I(f"v_exp_f32 v{SC+t}, v{SC+t}")
    I(f"v_mul_f32 v{VL}, v{VL}, v{VA}")
    for j in range(8):
        I(f"v_mul_f32 v{ACC+j}, v{ACC+j}, v{VA}")
    for t in range(8):
        I(f"v_add_f32 v{VL}, v{VL}, v{SC+t}")

def consume_V(R):
    for t in range(8):
        for rr in range(2):
            r0 = 2 * rr
            I(f"v_lshlrev_b32 v28, 16, v{R+4*t+r0}")
            I(f"v_and_b32 v29, s29, v{R+4*t+r0}")
            I(f"v_lshlrev_b32 v30, 16, v{R+4*t+r0+1}")
            I(f"v_and_b32 v31, s29, v{R+4*t+r0+1}")
            for k in range(4):
                I(f"v_fmac_f32 v{ACC+2*r0+k}, v{SC+t}, v{28+k}")

_lab = [0]
def newlab(p):
    _lab[0] += 1
    return f"L_{p}_{_lab[0]}"

def dyn_wait(cases):
    for T, cnt in cases:
        if T is None:
            I(f"s_waitcnt vmcnt({cnt})")
        else:
            lb = newlab("w")
            I(f"s_cmp_gt_u32 s40, {T}")
            I(f"s_cbranch_scc1 {lb}")
            I(f"s_waitcnt vmcnt({cnt})")
            LB(lb)

def cross_row(vals, tmps, op):
    for sw in ("v_permlane32_swap_b32", "v_permlane16_swap_b32"):
        for a, t in zip(vals, tmps):
            I(f"v_mov_b32 v{t}, v{a}")
        I("s_nop 1")
        for a, t in zip(vals, tmps):
            I(f"{sw} v{a}, v{t}")
        I("s_nop 0")
        for a, t in zip(vals, tmps):
            I(f"{op} v{a}, v{a}, v{t}")

def ffn_compute():
    GA = list(range(40, 56))
    UA = list(range(56, 64)) + list(range(240, 248))
    T = 248
    I("s_cmp_eq_u32 s41, 0")
    I("s_cbranch_scc1 L_noduty3")
    I("s_waitcnt vmcnt(32)")
    for k in GA + UA:
        I(f"v_mov_b32 v{k}, 0")
    for t in range(4):
        for (base, A) in ((192, GA), (208, UA)):
            for r in range(4):
                I(f"v_lshlrev_b32 v{T+2*r}, 16, v{base+4*t+r}")
                I(f"v_and_b32 v{T+2*r+1}, s29, v{base+4*t+r}")
            for b in range(2):
                for j in range(8):
                    I(f"v_fmac_f32 v{A[8*b+j]}, v{32+4*b+t}, v{T+j}")
    I("s_nop 1")
    for ctl in ("row_ror:4", "row_ror:8"):
        for k in GA + UA:
            I(f"v_add_f32_dpp v{k}, v{k}, v{k} {ctl}{DPPM}")
    I("v_lshrrev_b32 v32, 4, v1")
    I("s_lshl_b32 s36, s19, 2")
    I("v_add_u32 v32, s36, v32")
    I("v_lshlrev_b32 v32, 9, v32")
    I("v_and_b32 v33, 3, v1")
    I("v_lshl_add_u32 v32, v33, 5, v32")
    for mat, A in ((0, GA), (1, UA)):
        for b in range(2):
            r = A[8 * b]
            assert A[8*b:8*b+8] == list(range(r, r + 8))
            I(f"ds_write_b128 v32, v[{r}:{r+3}] offset:{FP+256*mat+128*b}")
            I(f"ds_write_b128 v32, v[{r+4}:{r+7}] offset:{FP+256*mat+128*b+16}")
    I("s_waitcnt lgkmcnt(0)")
    I("s_barrier")
    I("s_cmp_lg_u32 s19, 0")
    I("s_cbranch_scc1 L_ffn_skip")
    I("v_lshlrev_b32 v32, 2, v1")
    for half in range(2):
        for k in range(16):
            st = 16 * half + k
            I(f"ds_read_b32 v{192+k}, v32 offset:{FP+512*st}")
            I(f"ds_read_b32 v{208+k}, v32 offset:{FP+512*st+256}")
        I("s_waitcnt lgkmcnt(0)")
        if half == 0:
            I("v_add_f32 v56, v192, v193")
            I("v_add_f32 v57, v208, v209")
            rng = range(2, 16)
        else:
            rng = range(0, 16)
        for k in rng:
            I(f"v_add_f32 v56, v56, v{192+k}")
            I(f"v_add_f32 v57, v57, v{208+k}")
    rne(56, 56)
    rne(57, 57)
    k0 = math.sqrt(2.0 / math.pi)
    I("v_mul_f32 v58, v56, v56")
    I(f"v_mul_f32 v58, 0x{f2u(0.044715):08x}, v58")
    I("v_add_f32 v58, 1.0, v58")
    I("v_mul_f32 v58, v58, v56")
    I(f"v_mul_f32 v58, 0x{f2u(-2.0*k0*math.log2(math.e)):08x}, v58")
    I("v_exp_f32 v58, v58")
    I("s_nop 0")
    I("v_add_f32 v58, 1.0, v58")
    I("v_rcp_f32 v58, v58")
    I("s_nop 0")
    I("v_mul_f32 v58, v58, v56")
    rne(58, 58)
    I("v_mul_f32 v58, v58, v57")
    rne(58, 58)
    I(f"ds_write_b32 v32, v58 offset:{FH}")
    I("s_waitcnt lgkmcnt(0)")
    LB("L_ffn_skip")
    I("s_barrier")
    I("s_lshl_b32 s36, s19, 4")
    I("v_mov_b32 v63, s36")
    I(f"ds_read_b128 v[32:35], v63 offset:{FH}")
    I(f"ds_read_b128 v[36:39], v63 offset:{FH+128}")
    for k in range(16):
        I(f"v_mov_b32 v{40+k}, 0")
    I("s_waitcnt lgkmcnt(0)")
    for t in range(4):
        for r in range(4):
            I(f"v_lshlrev_b32 v{T+2*r}, 16, v{224+4*t+r}")
            I(f"v_and_b32 v{T+2*r+1}, s29, v{224+4*t+r}")
        for b in range(2):
            for j in range(8):
                I(f"v_fmac_f32 v{40+8*b+j}, v{32+4*b+t}, v{T+j}")
    I("v_lshlrev_b32 v63, 5, v1")
    I("s_lshl_b32 s36, s19, 12")
    I(f"s_add_u32 s36, s36, {FY}")
    I("v_add_u32 v63, s36, v63")
    for b in range(2):
        I(f"ds_write_b128 v63, v[{40+8*b}:{43+8*b}] offset:{2048*b}")
        I(f"ds_write_b128 v63, v[{44+8*b}:{47+8*b}] offset:{2048*b+16}")
    I("v_lshlrev_b32 v62, 2, v0")
    I(f"v_add_u32 v61, {FY}, v62")
    I("s_lshl_b32 s36, s42, 12")
    I(f"s_add_u32 s36, s36, {WS_F}")
    I("s_add_u32 s44, s14, s36")
    I("s_addc_u32 s45, s15, 0")
    I("s_waitcnt lgkmcnt(0)")
    I("s_barrier")
    for b in range(2):
        for k in range(8):
            I(f"ds_read_b32 v{32+8*b+k}, v61 offset:{4096*k+2048*b}")
    issue_block(WR, 26, WNT); adv(26)
    issue_block(WR + 32, 26, WNT)
    I("s_waitcnt lgkmcnt(0)")
    for b in range(2):
        I(f"v_add_f32 v{56+b}, v{32+8*b}, v{33+8*b}")
        for k in range(2, 8):
            I(f"v_add_f32 v{56+b}, v{56+b}, v{32+8*b+k}")
    I("global_store_dword v62, v56, s[44:45]")
    I("global_store_dword v62, v57, s[44:45] offset:2048")
    LB("L_noduty3")

def gen_k1():
    L.append(f".globl {K1}")
    L.append(".p2align 8")
    L.append(f".type {K1},@function")
    LB(K1)
    stamp(0)
    I("s_setprio 3")
    I("s_load_dwordx4 s[4:7], s[0:1], 0")
    I("s_load_dwordx4 s[8:11], s[0:1], 16")
    I("s_load_dwordx2 s[12:13], s[0:1], 32")
    I("s_load_dwordx2 s[14:15], s[0:1], 88")
    I("s_load_dwordx4 s[44:47], s[0:1], 48")
    I("s_load_dwordx2 s[48:49], s[0:1], 64")
    I(f"s_cmp_ge_u32 s2, {NATT}")
    I("s_cbranch_scc1 L_k1_end")
    I("v_readfirstlane_b32 s19, v0")
    I("v_and_b32 v1, 63, v0")
    I("v_lshlrev_b32 v2, 4, v1")
    I("s_lshr_b32 s19, s19, 6")
    I(f"s_mov_b32 s28, 0x{f2u(C_SCALE):08x}")
    I("s_mov_b32 s29, 0xffff0000")
    I("s_and_b32 s17, s2, 7")
    I("s_lshr_b32 s3, s2, 3")
    I("s_and_b32 s3, s3, 3")
    I("s_lshl_b32 s3, s3, 3")
    I("s_add_u32 s17, s17, s3")
    I("s_lshr_b32 s3, s2, 5")
    I("s_lshr_b32 s16, s3, 2")
    I("s_and_b32 s18, s3, 3")
    I("s_lshl_b32 s34, s16, 5")
    I("s_add_u32 s34, s34, s17")
    I("s_and_b32 s3, s2, 31")
    I("s_lshl_b32 s42, s16, 5")
    I("s_add_u32 s42, s42, s3")
    NO = -(-(256 - ND) // 3)
    NL = 256 - ND - 2 * NO
    assert NO <= 72 and NL > 0 and ND >= 40
    I(f"s_mul_i32 s38, s18, {NO}")
    I(f"s_sub_u32 s38, s38, {NO - ND}")
    I(f"s_mov_b32 s39, {NO}")
    I("s_cmp_eq_u32 s18, 3")
    I(f"s_cselect_b32 s39, {NL}, s39")
    I("s_cmp_eq_u32 s18, 0")
    I("s_cselect_b32 s38, 0, s38")
    I(f"s_cselect_b32 s39, {ND}, s39")
    I("s_cselect_b32 s41, 1, 0")
    I("s_lshl_b32 s36, s18, 6")
    I(f"s_cmp_lt_u32 s42, {NFFN}")
    I("s_cselect_b32 s38, s38, s36")
    I("s_cselect_b32 s39, s39, 64")
    I("s_cselect_b32 s41, s41, 0")
    I("s_and_b32 s36, s42, 7")
    I("s_lshr_b32 s37, s42, 3")
    I("s_min_u32 s3, s36, 3")
    I("s_mul_i32 s36, s36, 5")
    I("s_add_u32 s36, s36, s3")
    I("s_add_u32 s42, s36, s37")
    I("s_sub_u32 s40, s39, s19")
    I("s_add_u32 s40, s40, 7")
    I("s_lshr_b32 s40, s40, 3")
    I("s_lshl_b32 s35, s34, 21")
    I("s_lshl_b32 s36, s38, 13")
    I("s_add_u32 s35, s35, s36")
    I("s_lshl_b32 s36, s19, 13")
    I("s_add_u32 s36, s36, 4096")
    I("v_add_u32 v3, s36, v2")
    I("v_lshrrev_b32 v28, 4, v1")
    I("v_and_b32 v29, 15, v1")
    I("s_lshr_b32 s43, s2, 5")
    if ROT:
        I("s_add_u32 s43, s43, s19")
        I("s_and_b32 s43, s43, 7")
    else:
        I("s_mov_b32 s43, s19")
    I("v_lshlrev_b32 v26, 13, v28")
    I("v_lshl_add_u32 v26, v29, 4, v26")
    I("s_lshl_b32 s36, s43, 19")
    I("v_add_u32 v26, s36, v26")
    I("v_lshl_add_u32 v27, v29, 2, v28")
    I("s_lshl_b32 s36, s43, 6")
    I("v_add_u32 v27, s36, v27")
    I("v_lshlrev_b32 v27, 1, v27")
    I("s_lshl_b32 s36, s19, 6")
    I("v_lshrrev_b32 v61, 2, v1")
    I("v_add_u32 v61, s36, v61")
    I("v_and_b32 v62, 3, v1")
    I("s_mov_b32 s37, 2752")
    I("v_mul_lo_u32 v63, v61, s37")
    I("v_lshl_add_u32 v63, v62, 4, v63")
    I("v_lshlrev_b32 v61, 1, v61")
    I("s_lshl_b32 s37, s16, 10")
    I("s_lshl_b32 s38, s17, 8")
    I("s_lshl_b32 s39, s17, 17")
    I("s_waitcnt lgkmcnt(0)")
    I("s_add_u32 s24, s4, s37")
    I("s_addc_u32 s25, s5, 0")
    I("global_load_dwordx4 v[16:19], v2, s[24:25]")
    I("global_load_ushort v24, v27, s[24:25]")
    I("s_add_u32 s24, s10, s38")
    I("s_addc_u32 s25, s11, 0")
    I("s_add_u32 s20, s6, s35")
    I("s_addc_u32 s21, s7, 0")
    I("s_add_u32 s22, s8, s35")
    I("s_addc_u32 s23, s9, 0")
    I("s_add_u32 s26, s12, s39")
    I("s_addc_u32 s27, s13, 0")
    for t in range(16):
        R = WR + 4 * t
        I(f"global_load_dwordx4 v[{R}:{R+3}], v26, s[24:25]{WNT}")
        if t != 15:
            I("s_add_u32 s24, s24, 32768")
            I("s_addc_u32 s25, s25, 0")
    I("global_load_dwordx4 v[40:43], v2, s[4:5]")
    I("global_load_dwordx4 v[44:47], v2, s[4:5] offset:1024")
    for b in range(2):
        for t in range(4):
            I(f"global_load_ushort v{32+4*b+t}, v61, s[4:5] offset:{1024*b+32*t}")
    I("s_setprio 0")
    issue_block(KB[0], 20, NT); adv(20)
    issue_block(VB[0], 22, NT); adv(22)
    issue_block(KB[1], 20, NT); adv(20)
    issue_block(VB[1], 22, NT); adv(22)
    I("s_waitcnt vmcnt(58)")
    stamp(1)
    ln_stats(16, [20, 21, 22, 23, 28, 29, 30, 31], 27, 26, 4, 5, 6)
    ln_apply(25, 24, 4, 5, 6, 27, 26)
    for j in range(8):
        I(f"v_mov_b32 v{ACC+j}, 0")
    I("s_waitcnt vmcnt(50)")
    consume_bcast(WR, 25, ACC, 0)
    I("s_waitcnt vmcnt(42)")
    stamp(2)
    consume_bcast(WR + 32, 25, ACC, 8)
    cross_row([ACC + j for j in range(8)], [16 + j for j in range(8)], "v_add_f32")
    I("v_and_b32 v29, 15, v1")
    I("v_lshlrev_b32 v28, 5, v29")
    I("s_lshl_b32 s36, s19, 9")
    I("v_add_u32 v30, s36, v28")
    I(f"ds_write_b128 v30, v[8:11] offset:{LQ}")
    I(f"ds_write_b128 v30, v[12:15] offset:{LQ+16}")
    I("s_cmp_eq_u32 s41, 0")
    I("s_cbranch_scc1 L_noduty0")
    I("s_waitcnt vmcnt(32)")
    e = list(range(48, 56))
    for b in range(2):
        ln_stats(40 + 4 * b, e, 56, 57, 58, 59, 60)
        for t in range(4):
            ln_apply(32 + 4 * b + t, 32 + 4 * b + t, 58, 59, 60, 56, 57)
    LB("L_noduty0")
    I("s_waitcnt lgkmcnt(0)")
    I("s_barrier")
    for k in range(8):
        I(f"ds_read_b128 v[{WR+8*k}:{WR+8*k+3}], v28 offset:{LQ+512*k}")
        I(f"ds_read_b128 v[{WR+8*k+4}:{WR+8*k+7}], v28 offset:{LQ+512*k+16}")
    I("s_waitcnt lgkmcnt(0)")
    for j in range(8):
        I(f"v_add_f32 v{8+j}, v{WR+j}, v{WR+8+j}")
    for k in range(2, 8):
        for j in range(8):
            I(f"v_add_f32 v{8+j}, v{8+j}, v{WR+8*k+j}")
    for r in range(4):
        I(f"v_cvt_pk_bf16_f32 v{4+r}, v{8+2*r}, v{8+2*r+1}")
    stamp(3)
    I("s_cmp_eq_u32 s41, 0")
    I("s_cbranch_scc1 L_noduty2")
    I("s_lshl_b32 s38, s42, 6")
    I("s_lshl_b32 s39, s42, 15")
    I("s_lshl_b32 s36, s19, 12")
    I("s_add_u32 s39, s39, s36")
    I("s_add_u32 s44, s44, s38")
    I("s_addc_u32 s45, s45, 0")
    I("s_add_u32 s46, s46, s38")
    I("s_addc_u32 s47, s47, 0")
    I("s_add_u32 s48, s48, s39")
    I("s_addc_u32 s49, s49, 0")
    for t in range(4):
        I(f"global_load_dwordx4 v[{192+4*t}:{195+4*t}], v63, s[44:45]{WNT}")
        I(f"global_load_dwordx4 v[{208+4*t}:{211+4*t}], v63, s[46:47]{WNT}")
        if t != 3:
            I("s_add_u32 s44, s44, 44032")
            I("s_addc_u32 s45, s45, 0")
            I("s_add_u32 s46, s46, 44032")
            I("s_addc_u32 s47, s47, 0")
    for t in range(4):
        I(f"global_load_dwordx4 v[{224+4*t}:{227+4*t}], v2, s[48:49] offset:{1024*t}{WNT}")
    for t in range(4):
        I(f"global_load_dword v{240+t}, v2, s[4:5]")
    I("s_branch L_join2")
    LB("L_noduty2")
    issue_block(WR, 26, WNT); adv(26)
    issue_block(WR + 32, 26, WNT)
    LB("L_join2")
    for j in range(8):
        I(f"v_mov_b32 v{ACC+j}, 0")
    I(f"v_mov_b32 v{VM}, 0xff800000")
    I(f"v_mov_b32 v{VMC}, 0xff800000")
    I(f"v_mov_b32 v{VL}, 0")
    stamp(4)
    NMIN = (ND - 7 + 7) >> 3
    NMAX = 9
    def exists(m):
        if m < NMIN: return True
        if m >= NMAX: return False
        return None
    for n in range(NMAX):
        kb, vb = KB[n % 2], VB[n % 2]
        X = 16 if n < 2 else 0
        if n == 2:
            ffn_compute()
        if n >= NMIN:
            I(f"s_cmp_le_u32 s40, {n}")
            I("s_cbranch_scc1 L_epi")
        e1, e2 = exists(n + 1), exists(n + 2)
        if e1 is True:
            dyn_wait([(None, 24 + X)])
        elif e1 is False:
            dyn_wait([(None, 8)])
        else:
            dyn_wait([(n + 1, 8 + X), (None, 24 + X)])
        consume_K_dots(kb)
        def cond_issue(R, sb):
            if e2 is True:
                issue_block(R, sb, NT); adv(sb)
            elif e2 is None:
                lb = newlab("i")
                I(f"s_cmp_le_u32 s40, {n+2}")
                I(f"s_cbranch_scc1 {lb}")
                issue_block(R, sb, NT); adv(sb)
                LB(lb)
        cond_issue(kb, 20)
        consume_K_rest()
        cases = []
        if e1 is None:
            cases.append((n + 1, 0 + X))
        if e1 is False:
            cases.append((None, 0))
        else:
            if e2 is None:
                cases.append((n + 2, 16 + X))
                cases.append((None, 24 + X))
            elif e2 is False:
                cases.append((None, 16 + X))
            else:
                cases.append((None, 24 + X))
        dyn_wait(cases)
        consume_V(vb)
        cond_issue(vb, 22)
    LB("L_epi")
    stamp(5)
    I("v_lshrrev_b32 v28, 4, v1")
    I("v_and_b32 v29, 15, v1")
    I("v_lshlrev_b32 v30, 2, v28")
    I("s_lshl_b32 s36, s19, 4")
    I("v_add_u32 v30, s36, v30")
    I(f"ds_write_b32 v30, v{VMC} offset:{LM}")
    I(f"ds_write_b32 v30, v{VL} offset:{LL}")
    I("v_lshlrev_b32 v31, 7, v30")
    I("v_lshl_add_u32 v31, v29, 5, v31")
    I(f"ds_write_b128 v31, v[8:11] offset:{LO}")
    I(f"ds_write_b128 v31, v[12:15] offset:{LO+16}")
    I("v_and_b32 v30, 7, v29")
    I("v_lshrrev_b32 v31, 3, v29")
    I("v_lshl_add_u32 v30, v31, 6, v30")
    I("s_lshl_b32 s36, s19, 3")
    I("v_add_u32 v30, s36, v30")
    I("v_lshlrev_b32 v30, 2, v30")
    I("v_lshl_add_u32 v30, v28, 12, v30")
    I("v_lshlrev_b32 v31, 5, v28")
    for j in range(8):
        I(f"v_mov_b32 v{ACC+j}, 0")
    I("s_waitcnt lgkmcnt(0)")
    I("s_barrier")
    I(f"ds_read_b128 v[32:35], v31 offset:{LM}")
    I(f"ds_read_b128 v[36:39], v31 offset:{LM+16}")
    for k in range(8):
        I(f"ds_read_b32 v{40+k}, v30 offset:{LO+512*k}")
    I(f"ds_read_b128 v[48:51], v31 offset:{LL}")
    I(f"ds_read_b128 v[52:55], v31 offset:{LL+16}")
    I("s_waitcnt lgkmcnt(10)")
    I("v_max3_f32 v16, v32, v33, v34")
    I("v_max3_f32 v16, v16, v35, v36")
    I("v_max3_f32 v16, v16, v37, v38")
    I("v_max_f32 v16, v16, v39")
    cross_row([16], [17], "v_max_f32")
    for k in range(8):
        I(f"v_sub_f32 v{32+k}, v{32+k}, v16")
    for k in range(8):
        I(f"v_exp_f32 v{32+k}, v{32+k}")
    I("s_waitcnt lgkmcnt(2)")
    I("v_mul_f32 v17, v32, v40")
    for k in range(1, 8):
        I(f"v_fmac_f32 v17, v{32+k}, v{40+k}")
    cross_row([17], [18], "v_add_f32")
    I("v_cvt_pk_bf16_f32 v18, v17, 0")
    I("v_lshlrev_b32 v19, 16, v18")
    I("s_waitcnt vmcnt(0)")
    I("s_nop 0")
    for t in range(16):
        for r in range(4):
            I(f"v_dot2c_f32_bf16_dpp v{8+2*r}, v18, v{WR+4*t+r} row_newbcast:{t}{DPPM}")
            I(f"v_dot2c_f32_bf16_dpp v{8+2*r+1}, v19, v{WR+4*t+r} row_newbcast:{t}{DPPM}")
    I("v_lshlrev_b32 v30, 5, v1")
    I("s_lshl_b32 s36, s19, 11")
    I("v_add_u32 v30, s36, v30")
    I("v_lshlrev_b32 v31, 2, v0")
    I(f"ds_write_b128 v30, v[8:11] offset:{LY}")
    I(f"ds_write_b128 v30, v[12:15] offset:{LY+16}")
    I("s_lshl_b32 s36, s34, 2")
    I("s_add_u32 s36, s36, s18")
    I("s_lshl_b32 s37, s36, 11")
    I("s_add_u32 s44, s14, s37")
    I("s_addc_u32 s45, s15, 0")
    I("s_waitcnt lgkmcnt(0)")
    I("s_barrier")
    for k in range(8):
        I(f"ds_read_b32 v{40+k}, v31 offset:{LY+2048*k}")
    I("s_waitcnt lgkmcnt(0)")
    I("v_add_f32 v20, v40, v41")
    for k in range(2, 8):
        I(f"v_add_f32 v20, v20, v{40+k}")
    I("global_store_dword v31, v20, s[44:45]")
    if INSTR:
        stamp(6)
        I("s_getreg_b32 s78, hwreg(HW_REG_XCC_ID)")
        I("s_mov_b32 s79, s41")
        I("s_waitcnt lgkmcnt(0)")
        I("s_lshl_b32 s37, s2, 3")
        I("s_add_u32 s37, s37, s19")
        I("s_lshl_b32 s37, s37, 6")
        I("s_add_u32 s37, s37, 0x200000")
        I("s_add_u32 s46, s14, s37")
        I("s_addc_u32 s47, s15, 0")
        for k in range(16):
            I(f"v_mov_b32 v{96+k}, s{64+k}")
        I("v_mov_b32 v95, 0")
        I("s_mov_b64 s[60:61], exec")
        I("v_cmp_eq_u32 vcc, 0, v1")
        I("s_and_b64 exec, exec, vcc")
        for k in range(4):
            I(f"global_store_dwordx4 v95, v[{96+4*k}:{99+4*k}], s[46:47] offset:{16*k}")
        I("s_mov_b64 exec, s[60:61]")
    I("s_cmp_lg_u32 s19, 0")
    I("s_cbranch_scc1 L_k1_end")
    I("v_mul_f32 v17, v32, v48")
    for k in range(1, 8):
        I(f"v_fmac_f32 v17, v{32+k}, v{48+k}")
    cross_row([17], [18], "v_add_f32")
    I("s_lshl_b32 s37, s36, 3")
    I(f"s_add_u32 s37, s37, {WS_ML}")
    I("s_add_u32 s44, s14, s37")
    I("s_addc_u32 s45, s15, 0")
    I("v_mov_b32 v31, 0")
    I("v_cmp_eq_u32 vcc, 0, v1")
    I("s_and_saveexec_b64 s[46:47], vcc")
    I("global_store_dwordx2 v31, v[16:17], s[44:45]")
    LB("L_k1_end")
    I("s_endpgm")


def gen_k2():
    L.append(f".globl {K2}")
    L.append(".p2align 8")
    L.append(f".type {K2},@function")
    LB(K2)
    I("s_load_dwordx2 s[4:5], s[0:1], 0")
    I("s_load_dwordx2 s[6:7], s[0:1], 72")
    I("s_load_dwordx2 s[8:9], s[0:1], 88")
    I("s_cmp_ge_u32 s2, 16")
    I("s_cbranch_scc1 L_k2_end")
    I("s_lshr_b32 s16, s2, 3")
    I("s_and_b32 s17, s2, 7")
    I(f"s_mov_b32 s28, 0x{f2u(C_SCALE):08x}")
    I("v_and_b32 v1, 15, v0")
    I("v_lshrrev_b32 v2, 4, v0")
    I("s_lshl_b32 s18, s16, 7")
    I("v_lshlrev_b32 v3, 3, v2")
    I("v_add_u32 v3, s18, v3")
    I("v_lshlrev_b32 v4, 11, v3")
    I("s_lshl_b32 s19, s17, 8")
    I("v_lshl_add_u32 v5, v1, 4, s19")
    I("v_add_u32 v4, v4, v5")
    I("v_lshlrev_b32 v6, 3, v3")
    I("s_lshl_b32 s18, s16, 11")
    I("v_lshl_add_u32 v7, v2, 12, s18")
    I("v_add_u32 v7, v7, v5")
    I("s_waitcnt lgkmcnt(0)")
    I(f"s_add_u32 s10, s8, {WS_ML}")
    I("s_addc_u32 s11, s9, 0")
    I(f"s_add_u32 s12, s8, {WS_F}")
    I("s_addc_u32 s13, s9, 0")
    I(f"s_mov_b32 s14, {NFFN*4096}")
    I("s_mov_b32 s15, 0x00020000")
    for k in range(4):
        I(f"global_load_dwordx4 v[{16+4*k}:{19+4*k}], v6, s[10:11] offset:{16*k}")
    I("v_add_u32 v8, 0x2000, v4")
    for k in range(8):
        base = 4 if k < 4 else 8
        off = (k % 4) * 2048
        if off >= 4096:
            off -= 8192
            base = 8 if k < 4 else None
        if base is None:
            I(f"global_load_dwordx4 v[{32+4*k}:{35+4*k}], v9, s[8:9] offset:{off}")
        else:
            I(f"global_load_dwordx4 v[{32+4*k}:{35+4*k}], v{base}, s[8:9] offset:{off}")
        if k == 0:
            I("v_add_u32 v9, 0x4000, v4")
    I("v_add_u32 v10, 0x10000, v7")
    I("v_add_u32 v11, 0x20000, v7")
    I("buffer_load_dwordx4 v[64:67], v7, s[12:15], 0 offen")
    I("buffer_load_dwordx4 v[68:71], v10, s[12:15], 0 offen")
    I("buffer_load_dwordx4 v[72:75], v11, s[12:15], 0 offen")
    I("s_lshl_b32 s18, s16, 10")
    I("s_lshl_b32 s19, s17, 7")
    I("s_add_u32 s18, s18, s19")
    I("v_and_b32 v76, 63, v0")
    I("v_lshl_add_u32 v77, v76, 1, s18")
    I("global_load_ushort v78, v77, s[4:5]")
    I("s_waitcnt vmcnt(12)")
    for hh in range(2):
        b0 = 16 + 8 * hh
        I(f"v_max3_f32 v12, v{b0}, v{b0+2}, v{b0+4}")
        I(f"v_max_f32 v12, v12, v{b0+6}")
        for s in range(4):
            I(f"v_sub_f32 v{b0+2*s}, v{b0+2*s}, v12")
            I(f"v_exp_f32 v{b0+2*s}, v{b0+2*s}")
        I("s_nop 0")
        I(f"v_mul_f32 v13, v{b0}, v{b0+1}")
        for s in range(1, 4):
            I(f"v_fmac_f32 v13, v{b0+2*s}, v{b0+2*s+1}")
        I("v_rcp_f32 v13, v13")
        I("s_nop 0")
        for s in range(4):
            I(f"v_mul_f32 v{b0+2*s}, v{b0+2*s}, v13")
    I("s_waitcnt vmcnt(4)")
    for j in range(4):
        I(f"v_mul_f32 v{12+j}, v16, v{32+j}")
    for k in range(1, 8):
        for j in range(4):
            I(f"v_fmac_f32 v{12+j}, v{16+2*k}, v{32+4*k+j}")
    I("s_waitcnt vmcnt(1)")
    for j in range(4):
        I(f"v_add_f32 v{64+j}, v{64+j}, v{68+j}")
        I(f"v_add_f32 v{64+j}, v{64+j}, v{72+j}")
    I("v_lshlrev_b32 v3, 8, v2")
    I("v_lshl_add_u32 v3, v1, 4, v3")
    I("ds_write_b128 v3, v[12:15]")
    I("ds_write_b128 v3, v[64:67] offset:4096")
    I("v_lshlrev_b32 v4, 2, v0")
    I("s_waitcnt lgkmcnt(0)")
    I("s_barrier")
    I("v_cmp_gt_u32 vcc, 64, v0")
    I("s_and_saveexec_b64 s[20:21], vcc")
    I("s_cbranch_execz L_k2_end")
    for k in range(16):
        I(f"ds_read_b32 v{16+k}, v4 offset:{256*k}")
        I(f"ds_read_b32 v{32+k}, v4 offset:{4096+256*k}")
    I("s_waitcnt lgkmcnt(0)")
    I("v_add_f32 v8, v16, v17")
    I("v_add_f32 v9, v32, v33")
    for k in range(2, 16):
        I(f"v_add_f32 v8, v8, v{16+k}")
        I(f"v_add_f32 v9, v9, v{32+k}")
    rne(8, 8)
    rne(9, 9)
    I(f"v_mul_f32 v10, 0x{f2u(-math.log2(math.e)):08x}, v9")
    I("v_exp_f32 v10, v10")
    I("s_nop 0")
    I("v_add_f32 v10, 1.0, v10")
    I("v_rcp_f32 v10, v10")
    I("s_nop 0")
    I("v_mul_f32 v10, v10, v9")
    rne(10, 10)
    I("v_mul_f32 v10, v10, v8")
    rne(10, 10)
    I("s_waitcnt vmcnt(0)")
    I("v_lshlrev_b32 v6, 16, v78")
    I("v_add_f32 v10, v10, v6")
    I("v_cvt_pk_bf16_f32 v10, v10, v10")
    I("global_store_short v77, v10, s[6:7]")
    LB("L_k2_end")
    I("s_endpgm")


HDR = open(f"cdna_kernels/{NAME}.s.ref").read().split("; Override")[0]

out = []
out.append(HDR.rstrip("\n"))
out.append(f"; @launch kernel={K1} grid=({NATT},1,1) block=(512,1,1) lds={LDS1}")
out.append(f"; @launch kernel={K2} grid=(16,1,1) block=(256,1,1) lds=8192")
out.append('.amdgcn_target "amdgcn-amd-amdhsa--gfx950"')
out.append(".text")
gen_k1()
gen_k2()
out += L
out.append('.section .rodata,"a"')
for name, nv, ns in ((K1, 256, 96), (K2, 80, 32)):
    out.append(".p2align 6")
    out.append(f".amdhsa_kernel {name}")
    out.append(f"  .amdhsa_next_free_vgpr {nv}")
    out.append(f"  .amdhsa_next_free_sgpr {ns}")
    out.append(f"  .amdhsa_accum_offset {nv}")
    out.append("  .amdhsa_group_segment_fixed_size 0")
    out.append("  .amdhsa_kernarg_size 96")
    out.append("  .amdhsa_user_sgpr_count 2")
    out.append("  .amdhsa_user_sgpr_kernarg_segment_ptr 1")
    out.append("  .amdhsa_system_sgpr_workgroup_id_x 1")
    out.append("  .amdhsa_float_denorm_mode_32 3")
    out.append(".end_amdhsa_kernel")
dst = f"cdna_kernels/{NAME}.s"
for a in sys.argv[1:]:
    if a.startswith("out="):
        dst = a[4:]
open(dst, "w").write("\n".join(out) + "\n")
print("wrote", dst, len(out), "lines")
```
